```python
import torch

def _softmax(x, axis=-1):
    return torch.softmax(x, dim=axis)
def _gelu(x):
    return torch.nn.functional.gelu(x, approximate="tanh")
def _silu(x):
    return torch.nn.functional.silu(x)
def _sigmoid(x):
    return torch.sigmoid(x)
def _layernorm(x, axis=-1, eps=1e-5):
    m = x.mean(dim=axis, keepdim=True)
    v = x.var(dim=axis, keepdim=True, unbiased=False)
    return (x - m) / torch.sqrt(v + eps)
def _scatter_add(tgt, idx, src, axis=0):
    return tgt.clone().index_add_(axis, idx, src)
def _segment_sum(src, seg, n):
    out = torch.zeros((n,) + src.shape[1:], dtype=src.dtype)
    return out.index_add_(0, seg, src)
def _pad(x, pw):
    flat = tuple(v for pair in reversed(pw) for v in pair)
    return torch.nn.functional.pad(x, flat)

kernel_name = 'parallel_sum__sliding_local_dilated__swiglu_ffn__prompt'

def setup_inputs():

    _w = (lambda a: (lambda t: t.to(torch.bfloat16) if t.is_floating_point() else t)(torch.as_tensor(a)))
    def _A_setup():
        B, S, D = 1, 2048, 448
        return {
            "x": _w((lambda *s: torch.randn(*s, dtype=torch.bfloat16) * 0.05)(B, S, D)),
            "wqkv": _w((lambda *s: torch.randn(*s, dtype=torch.bfloat16) * 0.05)(D, 3 * D)),
            "wo": _w((lambda *s: torch.randn(*s, dtype=torch.bfloat16) * 0.05)(D, D)),
        }
    _A_in = _A_setup()

    def _B_setup():
        B, S, D, F = 1, 2048, 448, 1792
        return {
            "x": _w((lambda *s: torch.randn(*s, dtype=torch.bfloat16) * 0.05)(B, S, D)),
            "w_gate": _w((lambda *s: torch.randn(*s, dtype=torch.bfloat16) * 0.05)(D, F)),
            "w_up": _w((lambda *s: torch.randn(*s, dtype=torch.bfloat16) * 0.05)(D, F)),
            "w_down": _w((lambda *s: torch.randn(*s, dtype=torch.bfloat16) * 0.05)(F, D)),
        }
    _B_in = _B_setup()

    return {
        "A_x": _A_in["x"],
        "A_wqkv": _A_in["wqkv"],
        "A_wo": _A_in["wo"],
        "B_x": _B_in["x"],
        "B_w_gate": _B_in["w_gate"],
        "B_w_up": _B_in["w_up"],
        "B_w_down": _B_in["w_down"],
    }

def reference(A_x, A_wqkv, A_wo, B_x, B_w_gate, B_w_up, B_w_down):
    def _A_ref(x, wqkv, wo):
        B, S, D = x.shape
        H = 16; Dh = D // H
        W, dil = 8, 2
        qkv = (lambda x, *d: x.permute(*d))((x @ wqkv).reshape(B, S, 3, H, Dh), 2, 0, 3, 1, 4)
        q, k, v = qkv[0], qkv[1], qkv[2]
        scale = Dh ** -0.5
        pos = torch.arange(S)
        off = torch.arange(W) * dil
        idx = pos[:, None] - off[None, :]
        mask = idx >= 0
        idx_c = torch.where(mask, idx, 0).reshape(-1)
        kg = k[:, :, idx_c, :].reshape(B, H, S, W, Dh)
        vg = v[:, :, idx_c, :].reshape(B, H, S, W, Dh)
        logits = torch.einsum("bhsd,bhswd->bhsw", q, kg) * scale
        logits = torch.where(mask[None, None, :, :], logits, -1e9)
        attn = _softmax(logits, axis=-1)
        o = torch.einsum("bhsw,bhswd->bhsd", attn, vg)
        return (lambda x, *d: x.permute(*d))(o, 0, 2, 1, 3).reshape(B, S, D) @ wo

    def _B_ref(x, w_gate, w_up, w_down):
        g = _silu(x @ w_gate)
        u = x @ w_up
        return (g * u) @ w_down

    x = A_x
    xn = _layernorm(x, axis=-1)
    return x + _A_ref(xn, A_wqkv, A_wo) + _B_ref(xn, B_w_gate, B_w_up, B_w_down)
```

```python
import sys, re
src, dst, mode = sys.argv[1], sys.argv[2], sys.argv[3]
NAME = "parallel_sum__sliding_local_dilated__swiglu_ffn__prompt_kernel"
s = open(src).read()
m = re.search(r"; @launch (grid=\S+ block=\S+ lds=\d+)\n", s)
main = "; @launch kernel=%s %s\n" % (NAME, m.group(1))
emp = "; @launch kernel=empty_kernel grid=(256,1,1) block=(256,1,1) lds=0\n"
prb = "; @launch kernel=probe_kernel grid=(1,1,1) block=(64,1,1) lds=0\n"
L = {"ek": emp + main, "ke": main + emp, "kk": main + main, "k": main}.get(mode, main + prb)
s = s.replace(m.group(0), L)
extra_code = ".globl empty_kernel\n.p2align 8\n.type empty_kernel,@function\nempty_kernel:\ns_endpgm\n"
kernels = ["empty_kernel"]
if mode.startswith("p"):
    s = s.replace("s_load_dwordx16", "s_memrealtime s[88:89]\ns_memtime s[90:91]\ns_load_dwordx16", 1)
    body, tail = s.split("L_end:")
    parts = body.split("s_endpgm")
    rec = """s_waitcnt vmcnt(0)
s_memrealtime s[94:95]
s_memtime s[96:97]
s_waitcnt lgkmcnt(0)
s_sub_u32 s96, s96, s90
v_mov_b32 v16, s88
v_mov_b32 v17, s94
v_mov_b32 v18, s96
v_mov_b32 v19, 0
s_lshl_b32 s44, s2, 4
s_add_u32 s44, s44, %d
s_mov_b64 exec, 1
buffer_store_dwordx4 v[16:19], off, s[24:27], s44
""" % (40 << 20)
    which = int(sys.argv[4])
    for i in range(len(parts) - 1):
        if i in (which, 2): parts[i] += rec
    s = "s_endpgm".join(parts) + "L_end:" + tail
    extra_code += """.globl probe_kernel
.p2align 8
.type probe_kernel,@function
probe_kernel:
s_cmp_ge_u32 s2, 1
s_cbranch_scc1 L_pe
s_load_dwordx2 s[8:9], s[0:1], 72
s_mov_b32 s10, 0x4000000
s_mov_b32 s11, 0x20000
s_mov_b32 s12, %d
v_lshlrev_b32 v1, 4, v0
s_waitcnt lgkmcnt(0)
buffer_load_dwordx4 v[4:7], v1, s[8:11], s12 offen
buffer_load_dwordx4 v[8:11], v1, s[8:11], s12 offen offset:1024
buffer_load_dwordx4 v[12:15], v1, s[8:11], s12 offen offset:2048
buffer_load_dwordx4 v[16:19], v1, s[8:11], s12 offen offset:3072
s_waitcnt vmcnt(0)
v_min_u32 v20, v4, v8
v_min_u32 v20, v20, v12
v_min_u32 v20, v20, v16
v_max_u32 v21, v5, v9
v_max_u32 v21, v21, v13
v_max_u32 v21, v21, v17
v_max_u32 v22, v6, v10
v_max_u32 v22, v22, v14
v_max_u32 v22, v22, v18
v_max_u32 v23, v4, v8
v_max_u32 v23, v23, v12
v_max_u32 v23, v23, v16
s_mov_b32 s20, -1
s_mov_b32 s21, 0
s_mov_b32 s22, 0
s_mov_b32 s23, 0
s_mov_b32 s13, 0
L_red:
s_nop 4
v_readlane_b32 s14, v20, s13
v_readlane_b32 s15, v21, s13
v_readlane_b32 s16, v22, s13
v_readlane_b32 s17, v23, s13
s_nop 4
s_min_u32 s20, s20, s14
s_max_u32 s21, s21, s15
s_max_u32 s22, s22, s16
s_max_u32 s23, s23, s17
s_add_u32 s13, s13, 1
s_cmp_lt_u32 s13, 64
s_cbranch_scc1 L_red
""" % (40 << 20)
    if mode == "pspan": extra_code += "s_sub_u32 s24, s21, s20\ns_mul_i32 s24, s24, 10\n"
    if mode == "pskew": extra_code += "s_sub_u32 s24, s23, s20\ns_mul_i32 s24, s24, 10\n"
    if mode == "pcyc": extra_code += "s_lshr_b32 s24, s22, 1\n"
    if mode == "pzero": extra_code += "s_mov_b32 s24, 0\n"
    extra_code += """s_min_u32 s24, s24, 200000
s_memrealtime s[26:27]
s_waitcnt lgkmcnt(0)
L_spin:
s_memrealtime s[28:29]
s_waitcnt lgkmcnt(0)
s_sub_u32 s30, s28, s26
s_cmp_lt_u32 s30, s24
s_cbranch_scc1 L_spin
L_pe:
s_endpgm
"""
    kernels.append("probe_kernel")
kd = ""
for k in kernels:
    kd += """.p2align 6
.amdhsa_kernel %s
  .amdhsa_next_free_vgpr 64
  .amdhsa_next_free_sgpr 102
  .amdhsa_accum_offset 64
  .amdhsa_group_segment_fixed_size 0
  .amdhsa_kernarg_size 80
  .amdhsa_user_sgpr_count 2
  .amdhsa_user_sgpr_kernarg_segment_ptr 1
  .amdhsa_system_sgpr_workgroup_id_x 1
.end_amdhsa_kernel
""" % k
s = s.replace('.section .rodata,"a"', extra_code + '.section .rodata,"a"') + kd
open(dst, "w").write(s)
```

```python
import sys, re, json
src, dst, a, b = sys.argv[1:5]
mode = sys.argv[5] if len(sys.argv) > 5 else "x10"
NAME = "parallel_sum__sliding_local_dilated__swiglu_ffn__prompt_kernel"
names = json.load(open(src + ".json"))
def off(x):
    g, n = x[0], x[1:]
    return (32 << 20) + 100 * 1024 + (512 if g == "B" else 0) + 4 * names[g].index(n)
s = open(src).read()
m = re.search(r"; @launch (grid=\S+ block=\S+ lds=\d+)\n", s)
s = s.replace(m.group(0), "; @launch kernel=%s %s\n; @launch kernel=probe_kernel grid=(1,1,1) block=(64,1,1) lds=0\n" % (NAME, m.group(1)))
code = """.globl probe_kernel
.p2align 8
.type probe_kernel,@function
probe_kernel:
s_cmp_ge_u32 s2, 1
s_cbranch_scc1 L_pe
s_load_dwordx2 s[8:9], s[0:1], 72
s_mov_b32 s12, %d
s_mov_b32 s13, %d
s_waitcnt lgkmcnt(0)
s_load_dword s20, s[8:9], s12
s_load_dword s21, s[8:9], s13
s_mov_b32 s14, %d
s_load_dword s22, s[8:9], s14
s_waitcnt lgkmcnt(0)
s_sub_u32 s24, s21, s20
%s
s_min_u32 s24, s24, 200000
s_memrealtime s[26:27]
s_waitcnt lgkmcnt(0)
L_spin:
s_memrealtime s[28:29]
s_waitcnt lgkmcnt(0)
s_sub_u32 s30, s28, s26
s_cmp_lt_u32 s30, s24
s_cbranch_scc1 L_spin
L_pe:
s_endpgm
""" % (off(a), off(b), off("Astart"), "s_mul_i32 s24, s24, 10" if mode == "x10" else "s_nop 0" if mode == "x1" else """s_sub_u32 s23, s20, s22
s_mul_i32 s23, s23, 73
s_mul_i32 s24, s24, 100
s_lshr_b32 s25, s22, 2
s_mul_i32 s25, s25, 0x9e3779b1
s_lshr_b32 s25, s25, 19
s_cmp_gt_u32 s24, s23
s_cselect_b32 s24, 8192, 0
s_add_u32 s24, s24, s25""")
kd = """.p2align 6
.amdhsa_kernel probe_kernel
  .amdhsa_next_free_vgpr 64
  .amdhsa_next_free_sgpr 102
  .amdhsa_accum_offset 64
  .amdhsa_group_segment_fixed_size 0
  .amdhsa_kernarg_size 80
  .amdhsa_user_sgpr_count 2
  .amdhsa_user_sgpr_kernarg_segment_ptr 1
  .amdhsa_system_sgpr_workgroup_id_x 1
.end_amdhsa_kernel
"""
s = s.replace('.section .rodata,"a"', code + '.section .rodata,"a"') + kd
open(dst, "w").write(s)
```
